```python
import torch

def _softmax(x, axis=-1):
    return torch.softmax(x, dim=axis)
def _gelu(x):
    return torch.nn.functional.gelu(x, approximate="tanh")
def _silu(x):
    return torch.nn.functional.silu(x)
def _sigmoid(x):
    return torch.sigmoid(x)
def _layernorm(x, axis=-1, eps=1e-5):
    m = x.mean(dim=axis, keepdim=True)
    v = x.var(dim=axis, keepdim=True, unbiased=False)
    return (x - m) / torch.sqrt(v + eps)
def _scatter_add(tgt, idx, src, axis=0):
    return tgt.clone().index_add_(axis, idx, src)
def _segment_sum(src, seg, n):
    out = torch.zeros((n,) + src.shape[1:], dtype=src.dtype)
    return out.index_add_(0, seg, src)
def _pad(x, pw):
    flat = tuple(v for pair in reversed(pw) for v in pair)
    return torch.nn.functional.pad(x, flat)

kernel_name = 'standalone__sliding_local_fixed_window__prompt'

def setup_inputs():

    _w = (lambda a: (lambda t: t.to(torch.bfloat16) if t.is_floating_point() else t)(torch.as_tensor(a)))
    B, H, S, D = 1, 32, 2048, 128
    return {
        "q": _w((lambda *s: torch.randn(*s, dtype=torch.bfloat16) * 0.8)(B, H, S, D)),
        "k": _w((lambda *s: torch.randn(*s, dtype=torch.bfloat16) * 0.8)(B, H, S, D)),
        "v": _w((lambda *s: torch.randn(*s, dtype=torch.bfloat16) * 0.05)(B, H, S, D)),
    }

def reference(q, k, v):
    B, H, S, D = q.shape
    w = 32
    pos = torch.arange(S)
    rel = pos[:, None] - pos[None, :]
    mask = (rel >= 0) & (rel < w)
    scores = torch.einsum("bhqd,bhkd->bhqk", q, k) * (D ** -0.5)
    scores = torch.where(mask[None, None], scores, (lambda x, dt: x.to(dt))(torch.as_tensor(-1e9), q.dtype))
    p = _softmax(scores, axis=-1)
    return torch.einsum("bhqk,bhkd->bhqd", p, v)
```

```python
import re

REG_RE = re.compile(r'^(-|\|)?(abs\()?([vas])(\d+|\[(\d+):(\d+)\])\)?\|?$')
TRANS = ('v_exp_f32', 'v_log_f32', 'v_rcp_f32', 'v_rsq_f32', 'v_sqrt_f32', 'v_sin_f32', 'v_cos_f32')
NODEF_S = ('s_cmp', 's_waitcnt', 's_nop', 's_barrier', 's_branch', 's_cbranch', 's_endpgm',
           's_setprio', 's_sleep', 's_bitcmp', 's_setreg', 's_sendmsg', 's_setpc')


def regs_of(tok):
    tok = tok.strip()
    if tok == 'vcc':
        return {('s', 'vcc')}
    if tok == 'exec':
        return {('s', 'exec')}
    if tok == 'm0':
        return {('s', 'm0')}
    m = REG_RE.match(tok)
    if not m:
        return set()
    k = m.group(3)
    if m.group(5) is not None:
        return {(k, i) for i in range(int(m.group(5)), int(m.group(6)) + 1)}
    return {(k, int(m.group(4)))}


class Ins:
    def __init__(self, text):
        self.text = text
        body = text.split(';')[0].strip()
        self.label = None
        self.op = ''
        self.defs, self.uses = set(), set()
        self.cls = 'other'
        self.ws = 1
        self.target = None
        if not body:
            self.ws = 0
            self.cls = 'none'
            return
        if body.endswith(':'):
            self.label = body[:-1]
            self.ws = 0
            self.cls = 'none'
            return
        if body.startswith('.'):
            self.ws = 0
            self.cls = 'none'
            return
        sp = body.split(None, 1)
        op = self.op = sp[0]
        rest = sp[1] if len(sp) > 1 else ''
        toks = [t.strip() for t in rest.split(',')] if rest else []
        mods = ''
        if toks:
            last = toks[-1].split(None, 1)
            if len(last) > 1:
                toks[-1], mods = last[0], last[1]
        self.toks, self.mods = toks, mods
        R = [regs_of(t) for t in toks]
        allr = set().union(*R) if R else set()
        tail = set().union(*R[1:]) if len(R) > 1 else set()
        if op.startswith('v_mfma'):
            self.cls = 'mfma'
            self.passes = 8 if '32x32' in op else 4
            self.D, self.A, self.B, self.C = R[0], R[1], R[2], R[3]
            self.defs, self.uses = R[0], tail
        elif op.startswith('v_'):
            self.cls = 'valu'
            self.trans = any(op.startswith(t) for t in TRANS)
            self.perm = op.startswith('v_permlane')
            self.dpp = '_dpp' in op or 'row_' in mods or 'quad_perm' in rest
            self.rl = op.startswith('v_readfirstlane') or op.startswith('v_readlane')
            if self.perm:
                self.defs, self.uses = allr, allr
            elif op.startswith('v_fmac') or op.startswith('v_writelane') or self.dpp:
                self.defs, self.uses = R[0], allr
            elif op.startswith('v_nop'):
                pass
            else:
                self.defs, self.uses = R[0], tail
            if op.startswith('v_cndmask') and len(toks) == 3:
                self.uses = self.uses | {('s', 'vcc')}
            assert '_co_' not in op and 'cmpx' not in op, 'unsupported: ' + text
        elif op.startswith('buffer_') or op.startswith('global_'):
            self.cls = 'vmem'
            lds = op.startswith('global_load_lds') or ' lds' in (' ' + mods)
            self.lds = lds
            self.data = set()
            if 'load' in op and not lds:
                self.defs, self.uses = R[0], tail
            elif lds:
                self.uses = allr | {('s', 'm0')}
            else:
                self.uses = allr
                self.data = R[0] if op.startswith('buffer_') else R[1]
                if not ('x4' in op or 'x3' in op):
                    self.data = set()
        elif op.startswith('ds_'):
            self.cls = 'ds'
            if 'read' in op or 'permute' in op or 'swizzle' in op:
                self.defs, self.uses = R[0], tail
            else:
                self.uses = allr
        elif op.startswith('s_'):
            self.cls = 'salu'
            if op == 's_nop':
                self.ws = int(toks[0], 0) + 1
            if op.startswith('s_branch') or op.startswith('s_cbranch'):
                self.target = toks[0]
            if any(op.startswith(p) for p in NODEF_S):
                self.uses = allr
            else:
                self.defs, self.uses = R[0], tail
                if 'saveexec' in op:
                    self.defs = self.defs | {('s', 'exec')}
        else:
            raise ValueError('unknown op: ' + text)


def vec(rs):
    return {r for r in rs if r[0] in 'va'}


def sca(rs):
    return {r for r in rs if r[0] == 's'}


def need(p, c):
    n = 0
    if p.cls == 'valu':
        pv, ps = vec(p.defs), sca(p.defs)
        if c.cls == 'mfma' and pv & c.uses:
            n = max(n, 2)
        if c.cls == 'valu':
            if (c.perm or c.dpp) and pv & c.uses:
                n = max(n, 2)
            if c.rl and pv & c.uses:
                n = max(n, 1)
            if p.trans and pv & (c.uses | c.defs):
                n = max(n, 1)
            if ps & c.uses:
                n = max(n, 4 if c.op.startswith(('v_readlane', 'v_writelane')) else 2)
        if c.cls in ('vmem', 'ds') and p.trans and pv & c.uses:
            n = max(n, 1)
        if c.cls == 'vmem' and ps & c.uses:
            n = max(n, 5)
        if c.cls == 'salu' and ps & c.uses:
            n = max(n, 1)
    if p.cls == 'mfma':
        big = {4: 8, 8: 12}[p.passes]
        if c.cls == 'mfma':
            if p.D & (c.A | c.B):
                n = max(n, big)
            if p.D & c.C and not (p.D == c.C and p.passes == c.passes):
                n = max(n, p.passes + 2)
            if p.D & c.D and not (p.D == c.C and p.passes == c.passes):
                n = max(n, p.passes + 2)
        elif c.cls in ('valu', 'vmem', 'ds'):
            if p.D & (c.uses | c.defs):
                n = max(n, big)
            if p.C & c.defs:
                n = max(n, p.passes - 1)
    if p.cls == 'vmem' and p.data:
        if p.data & c.defs:
            n = max(n, 2)
    if p.cls == 'salu' and ('s', 'm0') in p.defs and c.cls == 'vmem' and c.lds:
        n = max(n, 1)
    return n


WIN = 16


def deficit(prev, c):
    d, dist = 0, 0
    for p in reversed(prev):
        if p.cls != 'none':
            d = max(d, need(p, c) - dist)
        dist += p.ws
        if dist >= WIN:
            break
    return d


class Prog:
    def __init__(self):
        self.ins = []

    def __call__(self, text):
        for line in text.strip('\n').split('\n'):
            self.ins.append(Ins(line.strip()))

    def finalize(self):
        out = []
        for c in self.ins:
            if c.cls != 'none':
                d = deficit(out, c)
                if d > 0:
                    out.append(Ins('s_nop %d' % (d - 1)))
            out.append(c)
        changed = True
        while changed:
            changed = False
            labels = {x.label: i for i, x in enumerate(out) if x.label}
            for i, b in enumerate(out):
                if b.target is None or b.target not in labels:
                    continue
                seq = out[max(0, i - 40):i + 1]
                worst = 0
                for c in out[labels[b.target]:labels[b.target] + 40]:
                    if c.cls != 'none':
                        worst = max(worst, deficit(seq, c))
                    seq = seq + [c]
                    if c.op in ('s_branch', 's_endpgm'):
                        break
                if worst > 0:
                    out.insert(i, Ins('s_nop %d' % (worst - 1)))
                    changed = True
                    break
        self.out = out
        return '\n'.join(('' if x.label or x.text.startswith('.') else '    ') + x.text for x in out)


NAME = 'standalone__sliding_local_fixed_window__prompt'
HEADER = """; Kernarg layout for this problem (48 bytes, ptrs only, base s[0:1]):
"""


def wrap(body, grid, block, lds, nvgpr, accum, nsgpr=96, notes=''):
    k = NAME + '_kernel'
    return (HEADER + notes +
            '; @launch grid=(%d,1,1) block=(%d,1,1) lds=%d\n' % (grid, block, lds) +
            '.amdgcn_target "amdgcn-amd-amdhsa--gfx950"\n.text\n.globl %s\n.p2align 8\n.type %s,@function\n%s:\n' % (k, k, k) +
            body + '\n.section .rodata,"a"\n.p2align 6\n.amdhsa_kernel %s\n' % k +
            '  .amdhsa_next_free_vgpr %d\n  .amdhsa_next_free_sgpr %d\n  .amdhsa_accum_offset %d\n' % (nvgpr, nsgpr, accum) +
            '  .amdhsa_group_segment_fixed_size 0\n  .amdhsa_kernarg_size 48\n  .amdhsa_user_sgpr_count 2\n'
            '  .amdhsa_user_sgpr_kernarg_segment_ptr 1\n  .amdhsa_system_sgpr_workgroup_id_x 1\n'
            '  .amdhsa_float_denorm_mode_32 3\n'
            '.end_amdhsa_kernel\n')


def vr(b, n=1, k='v'):
    return '%s%d' % (k, b) if n == 1 else '%s[%d:%d]' % (k, b, b + n - 1)


def sr(b, n=1):
    return vr(b, n, 's')
```

```python
import sys, math, struct
from asmlib import *

def f2u(x):
    return struct.unpack('<I', struct.pack('<f', x))[0]

def interleave(*streams):
    out = []
    n = max(len(s) for s in streams)
    for i in range(n):
        for s in streams:
            if i < len(s):
                out.append(s[i])
    return out

def gen(WAVES=4, xcd=True, ldmod='', stmod=''):
    NT = 2
    ROWS_WG = WAVES * 16 * NT
    NWG = 65536 // ROWS_WG
    p = Prog()
    SQ, SK, SV, SO, SKH, SVH = 16, 20, 24, 28, 32, 36
    sOFF, sHOFF, sBIAS, sC, sLO, sHI = 12, 13, 14, 15, 40, 41
    sT = 42
    sCOND = 48
    vQK, vVO = 1, 2
    vBIAS = 8
    vMASK = 12
    vTMP = 14
    vS = 24
    vQ = 48
    vK = 80
    vV = 144
    vP = 208
    NV = 220
    p('s_cmp_ge_u32 s2, %d' % NWG)
    p('s_cbranch_scc1 L_end')
    p('s_load_dwordx8 s[4:11], s[0:1], 0')
    p('v_lshrrev_b32 v5, 6, v0')
    p('v_and_b32 v3, 15, v0')
    p('v_readfirstlane_b32 s3, v5')
    p('v_bfe_u32 v4, v0, 4, 2')
    p('v_lshlrev_b32 v1, 8, v3')
    p('v_lshl_add_u32 v1, v4, 4, v1')
    p('v_lshlrev_b32 v2, 4, v3')
    p('v_lshl_add_u32 v2, v4, 10, v2')
    if xcd:
        p('s_and_b32 s12, s2, 7')
        p('s_lshl_b32 s12, s12, %d' % int(math.log2(NWG // 8)))
        p('s_lshr_b32 s13, s2, 3')
        p('s_add_u32 s2, s12, s13')
    p('s_lshl_b32 s12, s2, %d' % int(math.log2(WAVES)))
    p('s_add_u32 s12, s12, s3')
    p('s_lshl_b32 s12, s12, %d' % int(math.log2(16 * NT * 256)))
    p('s_sub_u32 s13, s12, 8192')
    p('s_and_b32 s14, s12, 0x7ffff')
    p('s_cselect_b32 s13, s13, 0')
    p('s_cselect_b32 s%d, 0x1000000, 0' % (SKH + 2))
    p('s_cselect_b32 s%d, 0x1000000, 0' % (SVH + 2))
    p('s_cselect_b32 s14, 0, 0xff800000')
    for srd in (SQ, SK, SV, SO):
        p('s_mov_b32 s%d, 0x1000000' % (srd + 2))
    for srd in (SQ, SK, SV, SO, SKH, SVH):
        p('s_mov_b32 s%d, 0x20000' % (srd + 3))
    p('s_add_u32 s%d, s13, 4096' % (sT + 1))
    p('s_add_u32 s%d, s12, 4096' % (sT + 3))
    p('s_waitcnt lgkmcnt(0)')
    for srd, src in ((SQ, 4), (SK, 6), (SV, 8), (SO, 10), (SKH, 6), (SVH, 8)):
        p('s_mov_b64 s[%d:%d], s[%d:%d]' % (srd, srd + 1, src, src + 1))
    soff = {0: sHOFF, 1: sT + 1, 2: sOFF, 3: sT + 3}
    def ldqk(dst, srd, so):
        for s in range(4):
            p('buffer_load_dwordx4 %s, v%d, %s, s%d offen offset:%d%s' % (vr(dst + 4 * s, 4), vQK, sr(srd, 4), so, 64 * s, ldmod))
    def ldv(kt):
        for i in range(4):
            p('buffer_load_dwordx4 %s, v%d, %s, s%d offen offset:%d%s' % (vr(vV + 16 * kt + 4 * i, 4), vVO, sr(SVH if kt < 2 else SV, 4), soff[kt], 256 * i, ldmod))
    ldqk(vQ, SQ, soff[2])
    for kt in range(3):
        ldqk(vK + 16 * kt, SKH if kt < 2 else SK, soff[kt])
    ldqk(vQ + 16, SQ, soff[3])
    ldqk(vK + 48, SK, soff[3])
    for kt in range(4):
        ldv(kt)
    p('s_mov_b32 s%d, 0x%08x' % (sC, f2u(128 ** -0.5 * math.log2(math.e))))
    p('s_mov_b32 s%d, 0x05040100' % sLO)
    p('s_mov_b32 s%d, 0x07060302' % sHI)
    for i in range(4):
        p('v_mov_b32 v%d, s%d' % (vBIAS + i, sBIAS))
    p('v_lshlrev_b32 v4, 2, v4')
    for i in range(4):
        p('v_add_u32 v5, %d, v4' % i)
        p('v_cmp_gt_u32 s[%d:%d], v5, v3' % (sCOND + 2 * i, sCOND + 2 * i + 1))
    p('v_mov_b32 v6, 0xffff')
    p('v_mov_b32 v7, 0xffff0000')
    for j in range(2):
        p('v_cndmask_b32 v%d, 0, v6, s[%d:%d]' % (vMASK + j, sCOND + 4 * j, sCOND + 4 * j + 1))
        p('v_cndmask_b32 v5, 0, v7, s[%d:%d]' % (sCOND + 4 * j + 2, sCOND + 4 * j + 3))
        p('v_or_b32 v%d, v%d, v5' % (vMASK + j, vMASK + j))
    def qk(T):
        for s in range(4):
            for t in range(3):
                kt = T + t
                d = vS + 12 * T + 4 * t
                c = vr(d, 4) if s else (vr(vBIAS, 4) if kt < 2 else '0')
                p('v_mfma_f32_16x16x32_bf16 %s, %s, %s, %s' % (vr(d, 4), vr(vK + 16 * kt + 4 * s, 4), vr(vQ + 16 * T + 4 * s, 4), c))
    p('s_waitcnt vmcnt(24)')
    qk(0)
    p('s_waitcnt vmcnt(16)')
    qk(1)
    def softmax(T):
        o = []
        s0, s1, s2 = vS + 12 * T, vS + 12 * T + 4, vS + 12 * T + 8
        a, b = vTMP + 2 * T, vTMP + 2 * T + 1
        P = vP + 6 * T
        for i in range(4):
            o.append('v_cndmask_b32 v%d, v%d, v%d, s[%d:%d]' % (s0 + i, s2 + i, s0 + i, sCOND + 2 * i, sCOND + 2 * i + 1))
        o.append('v_max3_f32 v%d, v%d, v%d, v%d' % (a, s1, s1 + 1, s1 + 2))
        o.append('v_max3_f32 v%d, v%d, v%d, v%d' % (b, s1 + 3, s0, s0 + 1))
        o.append('v_max3_f32 v%d, v%d, v%d, v%d' % (a, a, s0 + 2, s0 + 3))
        o.append('v_max_f32 v%d, v%d, v%d' % (a, a, b))
        for sw in ('16', '32'):
            o.append('v_mov_b32 v%d, v%d' % (b, a))
            o.append('v_permlane%s_swap_b32 v%d, v%d' % (sw, a, b))
            o.append('v_max_f32 v%d, v%d, v%d' % (a, a, b))
        o.append('v_mul_f32 v%d, s%d, v%d' % (a, sC, a))
        for j in range(8):
            o.append('v_fma_f32 v%d, v%d, s%d, -v%d' % (s0 + j, s0 + j, sC, a))
        for j in range(8):
            o.append('v_exp_f32 v%d, v%d' % (s0 + j, s0 + j))
        o.append('v_add_f32 v%d, v%d, v%d' % (a, s0, s0 + 1))
        o.append('v_add_f32 v%d, v%d, v%d' % (b, s0 + 2, s0 + 3))
        o.append('v_add_f32 v%d, v%d, v%d' % (s2, s0 + 4, s0 + 5))
        o.append('v_add_f32 v%d, v%d, v%d' % (s2 + 1, s0 + 6, s0 + 7))
        o.append('v_add_f32 v%d, v%d, v%d' % (a, a, b))
        o.append('v_add_f32 v%d, v%d, v%d' % (s2, s2, s2 + 1))
        o.append('v_add_f32 v%d, v%d, v%d' % (a, a, s2))
        for sw in ('16', '32'):
            o.append('v_mov_b32 v%d, v%d' % (b, a))
            o.append('v_permlane%s_swap_b32 v%d, v%d' % (sw, a, b))
            o.append('v_add_f32 v%d, v%d, v%d' % (a, a, b))
        o.append('v_rcp_f32 v%d, v%d' % (a, a))
        for j in range(8):
            o.append('v_mul_f32 v%d, v%d, v%d' % (s0 + j, s0 + j, a))
        o.append('v_cvt_pk_bf16_f32 v%d, v%d, v%d' % (P + 4, s0, s0 + 1))
        o.append('v_cvt_pk_bf16_f32 v%d, v%d, v%d' % (P + 5, s0 + 2, s0 + 3))
        o.append('v_cvt_pk_bf16_f32 v%d, v%d, v%d' % (P + 2, s1, s1 + 1))
        o.append('v_cvt_pk_bf16_f32 v%d, v%d, v%d' % (P + 3, s1 + 2, s1 + 3))
        for j in range(2):
            o.append('v_and_b32 v%d, v%d, v%d' % (P + j, P + 4 + j, vMASK + j))
        for j in range(2):
            o.append('v_xor_b32 v%d, v%d, v%d' % (P + 4 + j, P + 4 + j, P + j))
        return o
    for x in interleave(softmax(0), softmax(1)):
        p(x)
    vVT = vK
    def vtr(kt):
        for c in range(4):
            for h in range(2):
                r0, r1 = vV + 16 * kt + 8 * h + c, vV + 16 * kt + 8 * h + 4 + c
                p('v_perm_b32 v%d, v%d, v%d, s%d' % (vVT + 8 * (2 * c) + 2 * kt + h, r1, r0, sLO))
                p('v_perm_b32 v%d, v%d, v%d, s%d' % (vVT + 8 * (2 * c + 1) + 2 * kt + h, r1, r0, sHI))
    for kt in range(4):
        p('s_waitcnt vmcnt(%d)' % (12 - 4 * kt))
        vtr(kt)
    vO = [vQ, vV]
    vOP = [vV + 32, vV + 48]
    for T in range(2):
        P = vP + 6 * T
        for d in range(8):
            p('v_mfma_f32_16x16x32_bf16 %s, %s, %s, 0' % (vr(vO[T] + 4 * d, 4), vr(P, 4), vr(vVT + 8 * d + 2 * T, 4)))
        for d in range(8):
            p('v_mfma_f32_16x16x16_bf16 %s, %s, %s, %s' % (vr(vO[T] + 4 * d, 4), vr(P + 4, 2), vr(vVT + 8 * d + 2 * T + 4, 2), vr(vO[T] + 4 * d, 4)))
    for T in range(2):
        for i in range(4):
            for c in range(4):
                p('v_cvt_pk_bf16_f32 v%d, v%d, v%d' % (vOP[T] + 4 * i + c, vO[T] + 8 * c + i, vO[T] + 8 * c + 4 + i))
            p('buffer_store_dwordx4 %s, v%d, %s, s%d offen offset:%d%s' % (vr(vOP[T] + 4 * i, 4), vVO, sr(SO, 4), soff[2 + T], 256 * i, stmod))
    p('L_end:')
    p('s_endpgm')
    return wrap(p.finalize(), NWG, 64 * WAVES, 0, NV, NV, 64)

if __name__ == '__main__':
    out = sys.argv[1]
    kw = {}
    for a in sys.argv[2:]:
        k, v = a.split('=')
        kw[k] = eval(v)
    open(out, 'w').write(gen(**kw))
```
